```python
import torch

def _softmax(x, axis=-1):
    return torch.softmax(x, dim=axis)

def _gelu(x):
    return torch.nn.functional.gelu(x, approximate='tanh')

def _silu(x):
    return torch.nn.functional.silu(x)

def _sigmoid(x):
    return torch.sigmoid(x)

def _layernorm(x, axis=-1, eps=1e-05):
    m = x.mean(dim=axis, keepdim=True)
    v = x.var(dim=axis, keepdim=True, unbiased=False)
    return (x - m) / torch.sqrt(v + eps)

def _scatter_add(tgt, idx, src, axis=0):
    return tgt.clone().index_add_(axis, idx, src)

def _segment_sum(src, seg, n):
    out = torch.zeros((n,) + src.shape[1:], dtype=src.dtype)
    return out.index_add_(0, seg, src)

def _pad(x, pw):
    flat = tuple((v for pair in reversed(pw) for v in pair))
    return torch.nn.functional.pad(x, flat)
kernel_name = 'adaLN_cond__sliding_block_cached__dense_activation_relu__decode'

def setup_inputs():

    _w = lambda a: (lambda t: t.to(torch.bfloat16) if t.is_floating_point() else t)(torch.as_tensor(a))

    def _A_setup():
        B, Sq, D = (1, 1, 640)
        Hq, Hkv, Sk, Dh = (32, 32, 16384, 128)
        assert Hq % Hkv == 0, (Hq, Hkv)
        return {'x': _w((lambda *s: torch.randn(*s, dtype=torch.bfloat16) * 0.05)(B, Sq, D)), 'k_cache': _w((lambda *s: torch.randn(*s, dtype=torch.bfloat16) * 3.2)(B, Hkv, Sk, Dh)), 'v_cache': _w((lambda *s: torch.randn(*s, dtype=torch.bfloat16) * 0.4)(B, Hkv, Sk, Dh)), 'wq': _w((lambda *s: torch.randn(*s, dtype=torch.bfloat16) * 3.2)(D, Hq * Dh) * D ** (-0.5)), 'wo': _w((lambda *s: torch.randn(*s, dtype=torch.bfloat16) * 0.4)(Hq * Dh, D) * (Hq * Dh) ** (-0.5))}
    _A_in = _A_setup()

    def _B_setup():
        B, S, D, Dff = (1, 1, 640, 1728)
        return {'x': _w((lambda *s: torch.randn(*s, dtype=torch.bfloat16) * 0.05)(B, S, D)), 'w1': _w((lambda *s: torch.randn(*s, dtype=torch.bfloat16) * 0.05)(D, Dff)), 'w2': _w((lambda *s: torch.randn(*s, dtype=torch.bfloat16) * 0.05)(Dff, D))}
    _B_in = _B_setup()
    return {'A_x': _A_in['x'], 'A_k_cache': _A_in['k_cache'], 'A_v_cache': _A_in['v_cache'], 'A_wq': _A_in['wq'], 'A_wo': _A_in['wo'], 'B_x': _B_in['x'], 'B_w1': _B_in['w1'], 'B_w2': _B_in['w2'], 'c': _w((lambda *s: torch.randn(*s, dtype=torch.bfloat16) * 0.1)(1, 640) * 8.0), 'w_mod': _w((lambda *s: torch.randn(*s, dtype=torch.bfloat16) * 0.1)(640, 6 * 640) * 640 ** (-0.5) * 8.0)}

def reference(A_x, A_k_cache, A_v_cache, A_wq, A_wo, B_x, B_w1, B_w2, c, w_mod):

    def _A_ref(x, k_cache, v_cache, wq, wo):
        B, Sq, D = x.shape
        Hq, Dh = (32, 128)
        Hkv, Sk = (k_cache.shape[1], k_cache.shape[2])
        W = min(4096, max(256, Sk // 4))
        rep = Hq // Hkv
        q = (lambda x, *d: x.permute(*d))((x @ wq).reshape(B, Sq, Hq, Dh), 0, 2, 1, 3)
        k = (lambda x, n, axis: torch.repeat_interleave(x, n, dim=axis))(k_cache[:, :, Sk - W:, :], rep, axis=1)
        v = (lambda x, n, axis: torch.repeat_interleave(x, n, dim=axis))(v_cache[:, :, Sk - W:, :], rep, axis=1)
        scores = torch.einsum('bhqd,bhkd->bhqk', q, k) * Dh ** (-0.5)
        p = _softmax(scores, axis=-1)
        o = torch.einsum('bhqk,bhkd->bhqd', p, v)
        return (lambda x, *d: x.permute(*d))(o, 0, 2, 1, 3).reshape(B, Sq, Hq * Dh) @ wo

    def _B_ref(x, w1, w2):
        h = torch.einsum('bsd,df->bsf', x, w1)
        zero = torch.zeros_like(h)
        h = torch.maximum(h, zero)
        return torch.einsum('bsf,fd->bsd', h, w2)
    x = A_x
    mod = (_silu(c) @ w_mod).reshape(c.shape[0], 6, 1, -1)
    sa, ca, ga, sb, cb, gb = (mod[:, 0].clone(), mod[:, 1].clone(), mod[:, 2].clone(), mod[:, 3].clone(), mod[:, 4].clone(), mod[:, 5].clone())
    h = _layernorm(x, axis=-1) * (1 + ca) + sa
    x = x + ga * _A_ref(h, A_k_cache, A_v_cache, A_wq, A_wo)
    h = _layernorm(x, axis=-1) * (1 + cb) + sb
    x = x + gb * _B_ref(h, B_w1, B_w2)
    return x
```

```python
import sys
def gen(waves=16, flags='', mapping='lin', stagger=0, lds_dma=False, out='stream.s', nwg=256):
    KN='adaLN_cond__sliding_block_cached__dense_activation_relu__decode_kernel'
    per_wave = 256*1024//waves
    nload = per_wave//1024
    half = nload//2
    vg = 16 + nload*4
    L=[]
    A=L.append
    A(f'; @launch grid=({nwg},1,1) block=({waves*64},1,1) lds=0')
    A('.amdgcn_target "amdgcn-amd-amdhsa--gfx950"')
    A('.text'); A(f'.globl {KN}'); A('.p2align 8'); A(f'.type {KN},@function'); A(f'{KN}:')
    A('s_memrealtime s[20:21]')
    A(f's_cmp_ge_u32 s2, {nwg}'); A('s_cbranch_scc1 L_end')
    A('s_load_dwordx4 s[4:7], s[0:1], 8')
    A('s_load_dwordx2 s[8:9], s[0:1], 96')
    if mapping=='lin':
        A('s_lshr_b32 s10, s2, 3'); A('s_and_b32 s11, s2, 7')
    else:
        A('s_and_b32 s10, s2, 7'); A('s_lshl_b32 s10, s10, 2'); A('s_lshr_b32 s12, s2, 3'); A('s_and_b32 s12, s12, 3'); A('s_add_u32 s10, s10, s12'); A('s_lshr_b32 s11, s2, 5')
    A('s_lshl_b32 s12, s10, 22'); A('s_add_u32 s12, s12, 0x300000'); A('s_lshl_b32 s13, s11, 17'); A('s_add_u32 s12, s12, s13')
    A('v_lshrrev_b32 v1, 6, v0')
    A('v_and_b32 v2, 63, v0')
    A('v_lshlrev_b32 v2, 4, v2')
    A(f'v_mul_u32_u24 v3, {half*1024}, v1')
    A('v_add_u32 v2, v2, v3')
    A('v_add_u32 v2, s12, v2')
    A('s_waitcnt lgkmcnt(0)')
    A('s_mov_b32 s24, s4'); A('s_and_b32 s25, s5, 0xffff'); A('s_mov_b32 s26, 0x8000000'); A('s_mov_b32 s27, 0x20000')
    A('s_mov_b32 s28, s6'); A('s_and_b32 s29, s7, 0xffff'); A('s_mov_b32 s30, 0x8000000'); A('s_mov_b32 s31, 0x20000')
    r=16
    for srd in ('s[24:27]','s[28:31]'):
        for i in range(half):
            off=i*1024
            so = off//4096*4096
            if so:
                A(f's_movk_i32 s14, {so}')
                A(f'buffer_load_dwordx4 v[{r}:{r+3}], v2, {srd}, s14 offen offset:{off-so} {flags}')
            else:
                A(f'buffer_load_dwordx4 v[{r}:{r+3}], v2, {srd}, 0 offen offset:{off} {flags}')
            r+=4
    A('s_memrealtime s[22:23]')
    A('s_waitcnt vmcnt(0) lgkmcnt(0)')
    A('s_memrealtime s[16:17]')
    A('s_waitcnt lgkmcnt(0)')
    A('v_mov_b32 v4, s20'); A('v_mov_b32 v5, s21'); A('v_mov_b32 v6, s22'); A('v_mov_b32 v7, s23')
    A('v_mov_b32 v8, s16'); A('v_mov_b32 v9, s17'); A('v_mov_b32 v10, 0'); A('v_mov_b32 v11, 0')
    A(f's_mul_i32 s15, s2, {waves}')
    A('v_add_u32 v3, s15, v1'); A('v_lshlrev_b32 v3, 5, v3')
    A('v_and_b32 v12, 63, v0'); A('v_cmp_eq_u32 vcc, 0, v12'); A('s_and_saveexec_b64 s[18:19], vcc')
    A('global_store_dwordx4 v3, v[4:7], s[8:9]')
    A('global_store_dwordx4 v3, v[8:11], s[8:9] offset:16')
    A('L_end:'); A('s_endpgm')
    A('.section .rodata,"a"'); A('.p2align 6'); A(f'.amdhsa_kernel {KN}')
    acc = min(256,(vg+3)//4*4)
    A(f'  .amdhsa_next_free_vgpr {vg}'); A('  .amdhsa_next_free_sgpr 102'); A(f'  .amdhsa_accum_offset {acc}')
    A('  .amdhsa_group_segment_fixed_size 0'); A('  .amdhsa_kernarg_size 104'); A('  .amdhsa_user_sgpr_count 2')
    A('  .amdhsa_user_sgpr_kernarg_segment_ptr 1'); A('  .amdhsa_system_sgpr_workgroup_id_x 1'); A('.end_amdhsa_kernel')
    open(out,'w').write('\n'.join(L)+'\n')
if __name__=='__main__':
    gen(16,'', 'lin', out='st16.s')
    gen(16,'nt', 'lin', out='st16nt.s')
    gen(8,'', 'lin', out='st8.s')
    gen(8,'nt', 'lin', out='st8nt.s')
    gen(16,'', 'xcd', out='st16x.s')
    gen(16,'nt', 'xcd', out='st16xnt.s')
```
